```python
import torch

def _softmax(x, axis=-1):
    return torch.softmax(x, dim=axis)

def _gelu(x):
    return torch.nn.functional.gelu(x, approximate='tanh')

def _silu(x):
    return torch.nn.functional.silu(x)

def _sigmoid(x):
    return torch.sigmoid(x)

def _layernorm(x, axis=-1, eps=1e-05):
    m = x.mean(dim=axis, keepdim=True)
    v = x.var(dim=axis, keepdim=True, unbiased=False)
    return (x - m) / torch.sqrt(v + eps)

def _scatter_add(tgt, idx, src, axis=0):
    return tgt.clone().index_add_(axis, idx, src)

def _segment_sum(src, seg, n):
    out = torch.zeros((n,) + src.shape[1:], dtype=src.dtype)
    return out.index_add_(0, seg, src)

def _pad(x, pw):
    flat = tuple((v for pair in reversed(pw) for v in pair))
    return torch.nn.functional.pad(x, flat)
kernel_name = 'adaLN_cond__ssm_conv_s4d__glu_gated_geglu__prompt'

def setup_inputs():

    _w = lambda a: (lambda t: t.to(torch.bfloat16) if t.is_floating_point() else t)(torch.as_tensor(a))

    def _A_setup():
        Bsz, L, D, N = (1, 2048, 640, 128)
        return {'u': _w((lambda *s: torch.randn(*s, dtype=torch.bfloat16) * 0.05)(Bsz, L, D)), 'log_A_real': _w((lambda *s: torch.randn(*s, dtype=torch.bfloat16) * 3.2)(D, N) * 0.5), 'A_imag': _w((lambda *s: torch.randn(*s, dtype=torch.bfloat16) * 0.05)(D, N) * 3.14), 'C_real': _w((lambda *s: torch.randn(*s, dtype=torch.bfloat16) * 0.4)(D, N) / N ** 0.5), 'C_imag': _w((lambda *s: torch.randn(*s, dtype=torch.bfloat16) * 0.4)(D, N) / N ** 0.5), 'log_dt': _w((lambda *s: torch.randn(*s, dtype=torch.bfloat16) * 0.05)(D) * 0.5 - 4.0), 'D_skip': _w((lambda *s: torch.randn(*s, dtype=torch.bfloat16) * 0.05)(D))}
    _A_in = _A_setup()

    def _B_setup():
        B, S, Dm, Df = (1, 2048, 640, 1728)
        return {'x': _w((lambda *s: torch.randn(*s, dtype=torch.bfloat16) * 0.05)(B, S, Dm)), 'w_gate': _w((lambda *s: torch.randn(*s, dtype=torch.bfloat16) * 0.8)(Dm, Df) * Dm ** (-0.5)), 'w_up': _w((lambda *s: torch.randn(*s, dtype=torch.bfloat16) * 0.8)(Dm, Df) * Dm ** (-0.5)), 'w_down': _w((lambda *s: torch.randn(*s, dtype=torch.bfloat16) * 0.8)(Df, Dm) * Df ** (-0.5))}
    _B_in = _B_setup()
    return {'A_u': _A_in['u'], 'A_log_A_real': _A_in['log_A_real'], 'A_A_imag': _A_in['A_imag'], 'A_C_real': _A_in['C_real'], 'A_C_imag': _A_in['C_imag'], 'A_log_dt': _A_in['log_dt'], 'A_D_skip': _A_in['D_skip'], 'B_x': _B_in['x'], 'B_w_gate': _B_in['w_gate'], 'B_w_up': _B_in['w_up'], 'B_w_down': _B_in['w_down'], 'c': _w((lambda *s: torch.randn(*s, dtype=torch.bfloat16) * 0.2)(1, 640) * 8.0), 'w_mod': _w((lambda *s: torch.randn(*s, dtype=torch.bfloat16) * 0.2)(640, 6 * 640) * 640 ** (-0.5) * 8.0)}

def reference(A_u, A_log_A_real, A_A_imag, A_C_real, A_C_imag, A_log_dt, A_D_skip, B_x, B_w_gate, B_w_up, B_w_down, c, w_mod):

    def _A_ref(u, log_A_real, A_imag, C_real, C_imag, log_dt, D_skip):
        L = u.shape[1]
        dt = torch.exp(log_dt)
        A = -torch.exp(log_A_real) + 1j * A_imag
        C = (C_real + 1j * C_imag) * dt[:, None]
        pos = (lambda x, dt: x.to(dt))(torch.arange(L), log_dt.dtype)
        P = torch.exp((A * dt[:, None])[:, :, None] * pos[None, None, :])
        K = 2.0 * torch.einsum('dn,dnl->dl', C, P).real
        L2 = 2 * L
        u_t = (lambda x, *d: x.permute(*d))(u, 0, 2, 1)
        Kf = (lambda x, *a, **k: torch.fft.rfft(x.float(), *a, **k))(K, L2)
        Uf = (lambda x, *a, **k: torch.fft.rfft(x.float(), *a, **k))(u_t, L2)
        y = (lambda x, *a, **k: torch.fft.irfft(x, *a, **k).to(torch.bfloat16))(Uf * Kf[None, :, :], L2)[:, :, :L]
        y = (lambda x, *d: x.permute(*d))(y, 0, 2, 1)
        return y + u * D_skip[None, None, :]

    def _B_ref(x, w_gate, w_up, w_down):
        g = torch.einsum('bsd,df->bsf', x, w_gate)
        u = torch.einsum('bsd,df->bsf', x, w_up)
        h = _gelu(g) * u
        return torch.einsum('bsf,fd->bsd', h, w_down)
    x = A_u
    mod = (_silu(c) @ w_mod).reshape(c.shape[0], 6, 1, -1)
    sa, ca, ga, sb, cb, gb = (mod[:, 0].clone(), mod[:, 1].clone(), mod[:, 2].clone(), mod[:, 3].clone(), mod[:, 4].clone(), mod[:, 5].clone())
    h = _layernorm(x, axis=-1) * (1 + ca) + sa
    x = x + ga * _A_ref(h, A_log_A_real, A_A_imag, A_C_real, A_C_imag, A_log_dt, A_D_skip)
    h = _layernorm(x, axis=-1) * (1 + cb) + sb
    x = x + gb * _B_ref(h, B_w_gate, B_w_up, B_w_down)
    return x
```

```python
import re

TRANS = ('v_exp_f32','v_log_f32','v_rcp_f32','v_rsq_f32','v_sqrt_f32','v_sin_f32','v_cos_f32','v_rcp_iflag_f32','v_exp_f16','v_rcp_f16')
REG = re.compile(r'^(-|abs\(|\|)?([vas])(?:(\d+)|\[(\d+):(\d+)\])\)?\|?$')

def regs(tok):
    tok = tok.strip()
    if tok in ('vcc',): return {('s',106),('s',107)}
    if tok == 'vcc_lo': return {('s',106)}
    if tok == 'vcc_hi': return {('s',107)}
    if tok == 'exec': return {('s',126),('s',127)}
    if tok == 'm0': return {('s',124)}
    m = REG.match(tok)
    if not m: return set()
    c = m.group(2)
    if m.group(3) is not None: return {(c, int(m.group(3)))}
    return {(c, i) for i in range(int(m.group(4)), int(m.group(5)) + 1)}

class I:
    __slots__ = ('text','op','dst','src','kind','passes','srcC','dpp','store_data','lds_dma','ops','sdwa_dst')
    def __init__(self, text):
        self.text = text
        t = text.split(';')[0].strip()
        parts = t.split(None, 1)
        self.op = op = parts[0]
        rest = parts[1] if len(parts) > 1 else ''
        toks = []; cur = ''; depth = 0
        for ch in rest:
            if ch == '[': depth += 1
            if ch == ']': depth -= 1
            if ch == ',' and depth == 0: toks.append(cur.strip()); cur = ''
            else: cur += ch
        if cur.strip(): toks.append(cur.strip())
        mods = ''
        if toks:
            sp = toks[-1].split(None, 1)
            toks[-1] = sp[0]
            mods = sp[1] if len(sp) > 1 else ''
        self.ops = toks
        self.dst = set(); self.src = set(); self.passes = 0; self.srcC = set(); self.store_data = set()
        self.dpp = ('dpp' in op) or ('row_' in mods) or ('quad_perm' in mods) or ('wave_' in mods)
        self.lds_dma = False; self.sdwa_dst = False
        R = [regs(x) for x in toks]
        base = re.sub(r'_(e32|e64|dpp|sdwa)$', '', op)
        if op.startswith('v_mfma') or op.startswith('v_smfmac'):
            self.kind = 'mfma'
            self.passes = 8 if '32x32' in op else 4
            self.dst = R[0]; self.src = R[1] | R[2] | R[3]; self.srcC = R[3]
        elif op.startswith('v_'):
            self.kind = 'trans' if base in TRANS else 'valu'
            if base.startswith('v_cmpx'):
                raise Exception('avoid v_cmpx')
            if base.startswith('v_cmp'):
                self.dst = R[0]; self.src = set().union(*R[1:])
            elif base in ('v_add_co_u32','v_sub_co_u32','v_subrev_co_u32','v_addc_co_u32','v_subb_co_u32','v_mad_u64_u32'):
                self.dst = R[0] | R[1]; self.src = set().union(*R[2:])
            elif base in ('v_permlane32_swap_b32','v_permlane16_swap_b32','v_swap_b32'):
                self.dst = R[0] | R[1]; self.src = R[0] | R[1]
            else:
                self.dst = R[0]; self.src = set().union(*R[1:]) if len(R) > 1 else set()
                if base in ('v_fmac_f32','v_dot2c_f32_bf16','v_pk_fmac_f16','v_writelane_b32') or self.dpp or 'sdwa' in op:
                    self.src |= R[0]
                if base == 'v_cndmask_b32' and len(toks) == 3:
                    self.src |= regs('vcc')
            if 'dst_sel:WORD' in mods or 'dst_sel:BYTE' in mods: self.sdwa_dst = True
        elif op.startswith('buffer_') or op.startswith('global_') or op.startswith('flat_'):
            self.kind = 'vmem'
            lds = (' lds' in ' ' + mods) or ('_lds_' in op)
            if op.startswith('buffer_wbl2') or op.startswith('buffer_inv'):
                pass
            elif 'load' in op:
                if lds:
                    self.lds_dma = True; self.src = set().union(*R) | regs('m0')
                else:
                    self.dst = R[0]; self.src = set().union(*R[1:])
            elif 'store' in op:
                self.src = set().union(*R)
                data = R[0] if op.startswith('buffer_') else R[1]
                if 'x4' in op or 'x3' in op: self.store_data = data
            elif 'atomic' in op:
                ret = 'sc0' in mods
                if op.startswith('global_') and ret:
                    self.dst = R[0]; self.src = set().union(*R[1:])
                elif op.startswith('buffer_') and ret:
                    self.dst = R[0]; self.src = set().union(*R)
                else:
                    self.src = set().union(*R)
            else: raise Exception(text)
        elif op.startswith('ds_'):
            self.kind = 'ds'
            if op.startswith('ds_read') or op.startswith('ds_bpermute') or op.startswith('ds_swizzle') or op.startswith('ds_permute'):
                self.dst = R[0]; self.src = set().union(*R[1:])
            else:
                self.src = set().union(*R)
        elif op.startswith('s_'):
            self.kind = 'salu'
            if op in ('s_nop','s_waitcnt','s_barrier','s_endpgm','s_sleep','s_setprio','s_branch') or op.startswith('s_cbranch'):
                pass
            elif op.startswith('s_cmp') or op.startswith('s_bitcmp'):
                self.src = set().union(*R)
            elif op.startswith('s_load') or op.startswith('s_buffer_load'):
                self.kind = 'smem'; self.dst = R[0]; self.src = set().union(*R[1:])
            elif op in ('s_memtime','s_memrealtime'):
                self.kind = 'smem'; self.dst = R[0]
            else:
                self.dst = R[0]; self.src = set().union(*R[1:]) if len(R) > 1 else set()
                if 'saveexec' in op:
                    self.dst |= regs('exec'); self.src |= regs('exec')
                if op in ('s_addk_i32','s_mulk_i32'): self.src |= R[0]
        else:
            raise Exception('unknown op ' + text)
    def weight(self):
        if self.op == 's_nop': return int(self.ops[0], 0) + 1
        return 1

def isV(s): return {r for r in s if r[0] in 'va'}
def isS(s): return {r for r in s if r[0] == 's'}

def need(p, c):
    n = 0
    pv = isV(p.dst); ps = isS(p.dst)
    valu_p = p.kind in ('valu','trans')
    valu_c = c.kind in ('valu','trans')
    if valu_p:
        if pv & c.src:
            if c.kind == 'mfma': n = max(n, 2)
            if valu_c and c.dpp: n = max(n, 2)
            if c.op.startswith('v_permlane'): n = max(n, 2)
            if c.op.startswith('v_readlane') or c.op.startswith('v_readfirstlane'): n = max(n, 1)
            if p.kind == 'trans': n = max(n, 1)
            if p.sdwa_dst: n = max(n, 1)
        if ps & c.src:
            if valu_c: n = max(n, 4 if (c.op.startswith('v_readlane') or c.op.startswith('v_writelane')) else 2)
            if c.kind == 'vmem': n = max(n, 5)
            if c.kind in ('salu','smem'): n = max(n, 3)
            if c.kind == 'mfma': n = max(n, 2)
    if p.op.startswith('v_dot') and (p.dst & (c.src | c.dst)):
        same_c = (c.op == p.op) and (p.dst == c.dst) and not (p.dst & (regs(c.ops[1]) | regs(c.ops[2])))
        if not same_c: n = max(n, 3)
    if p.kind == 'mfma':
        big = p.passes == 8
        if c.kind == 'mfma':
            ab = regs(c.ops[1]) | regs(c.ops[2])
            if p.dst & ab: n = max(n, 12 if big else 8)
            if p.dst & c.srcC:
                if not (p.dst == c.srcC and p.passes == c.passes): n = max(n, 10 if big else 6)
            elif p.dst & c.dst:
                n = max(n, 10 if big else 6)
        else:
            if p.dst & (c.src | c.dst): n = max(n, 12 if big else 8)
            if valu_c and (p.srcC & c.dst): n = max(n, 7 if big else 3)
    if p.store_data and (p.store_data & c.dst):
        n = max(n, 2)
    if p.kind == 'salu' and ('s',124) in p.dst and (c.lds_dma or 'addtid' in c.op): n = max(n, 1)
    return n

MAXW = 20

class K:
    def __init__(self, name, vgpr=256, sgpr=102, accum=None, wg_y=False):
        self.name = name; self.lines = []; self.vgpr = vgpr; self.sgpr = sgpr
        self.accum = accum; self.wg_y = wg_y
        self.uid = 0
    def __call__(self, s):
        for l in s.strip('\n').split('\n'):
            l = l.strip()
            if l and not l.startswith(';'): self.lines.append(l)
    def label(self, base):
        self.uid += 1
        return f"L_{self.name[:10]}_{base}_{self.uid}"
    def pad(self):
        items = []
        for l in self.lines:
            if l.endswith(':'): items.append(('label', l[:-1]))
            elif l.startswith('.'): items.append(('dir', l))
            else: items.append(('ins', I(l)))
        labelpos = {x[1]: i for i, x in enumerate(items) if x[0] == 'label'}
        out = []; hist = []
        snap = {}
        nn = 0
        def required(h, c):
            r = 0
            for p, age in h:
                w = need(p, c)
                if w > age: r = max(r, w - age)
            return r
        def advance(h, w):
            return [[p, a + w] for p, a in h if a + w < MAXW]
        for idx, (t, x) in enumerate(items):
            if t == 'label':
                if x in snap:
                    hist = hist + snap[x]
                out.append(x + ':'); continue
            if t == 'dir':
                out.append(x); continue
            r = required(hist, x)
            if x.op.startswith('s_cbranch') or x.op == 's_branch':
                tgt = x.ops[0]
                if tgt in labelpos and labelpos[tgt] < idx:
                    h2 = advance(hist, 1); j = labelpos[tgt] + 1; ext = 0; walked = 0
                    while j < len(items) and walked < MAXW:
                        if items[j][0] == 'ins':
                            c = items[j][1]
                            ext = max(ext, required(h2, c))
                            h2 = advance(h2, c.weight()); walked += c.weight()
                            if c.op.startswith('s_cbranch') or c.op == 's_branch':
                                pass
                        j += 1
                    r = max(r, ext)
            while r > 0:
                k = min(r, 16)
                out.append(f"s_nop {k-1}"); nn += 1
                hist = advance(hist, k); r -= k
            out.append(x.text)
            hist = advance(hist, x.weight())
            if x.dst or x.store_data or x.srcC: hist.append([x, 0])
            if x.op.startswith('s_cbranch') or x.op == 's_branch':
                tgt = x.ops[0]
                if tgt in labelpos and labelpos[tgt] > idx:
                    snap[tgt] = snap.get(tgt, []) + [[p, a] for p, a in hist]
                if x.op == 's_branch': hist = []
        self.nops = nn
        return out
    def check_regs(self):
        mv = ma = ms = -1
        for l in self.lines:
            if l.endswith(':') or l.startswith('.'): continue
            i = I(l)
            for c, n in i.dst | i.src:
                if c == 'v': mv = max(mv, n)
                elif c == 'a': ma = max(ma, n)
                elif n < 102: ms = max(ms, n)
        return mv, ma, ms
    def text(self):
        h = f".globl {self.name}\n.p2align 8\n.type {self.name},@function\n{self.name}:\n"
        body = self.pad()
        mv, ma, ms = self.check_regs()
        accum = self.accum if self.accum is not None else min(256, (self.vgpr + 3) // 4 * 4)
        assert mv < accum, (self.name, 'vgpr', mv, accum)
        assert accum + ma + 1 <= self.vgpr or ma < 0, (self.name, 'agpr', ma, accum, self.vgpr)
        assert mv < self.vgpr, (self.name, mv, self.vgpr)
        assert ms < self.sgpr, (self.name, 'sgpr', ms, self.sgpr)
        self.stats = dict(v=mv+1, a=ma+1, s=ms+1, n=len(body), nops=self.nops)
        return h + '\n'.join(('' if l.endswith(':') else '  ') + l for l in body) + '\n'
    def desc(self):
        accum = self.accum if self.accum is not None else min(256, (self.vgpr + 3) // 4 * 4)
        s = f".amdhsa_kernel {self.name}\n  .amdhsa_next_free_vgpr {self.vgpr}\n  .amdhsa_next_free_sgpr {self.sgpr}\n  .amdhsa_accum_offset {accum}\n"
        s += "  .amdhsa_group_segment_fixed_size 0\n  .amdhsa_kernarg_size 128\n  .amdhsa_user_sgpr_count 2\n  .amdhsa_user_sgpr_kernarg_segment_ptr 1\n  .amdhsa_system_sgpr_workgroup_id_x 1\n"
        if self.wg_y: s += "  .amdhsa_system_sgpr_workgroup_id_y 1\n"
        s += "  .amdhsa_float_denorm_mode_32 3\n"
        s += ".end_amdhsa_kernel\n"
        return s

HEADER = open('adaLN_cond__ssm_conv_s4d__glu_gated_geglu__prompt.s.ref').read().split('; Override launch')[0]

def program(kernels, launches, verbose=True):
    out = HEADER
    for k, g, b, lds in launches:
        out += f"; @launch kernel={k.name} grid=({g},1,1) block=({b},1,1) lds={lds}\n"
    out += '.amdgcn_target "amdgcn-amd-amdhsa--gfx950"\n.text\n'
    for k in kernels:
        out += k.text()
        if verbose: print(k.name, k.stats)
    out += '.section .rodata,"a"\n'
    for k in kernels: out += ".p2align 6\n" + k.desc()
    return out
```

```python
from asmgen import K
from layout import *

def srd(k, s, ptr_lo, size):
    k(f"s_mov_b32 s{s}, s{ptr_lo}\ns_mov_b32 s{s+1}, s{ptr_lo+1}\ns_mov_b32 s{s+2}, {size}\ns_mov_b32 s{s+3}, 0x20000")

def srd_off(k, s, ptr_lo, off, size):
    k(f"s_add_u32 s{s}, s{ptr_lo}, {off}\ns_addc_u32 s{s+1}, s{ptr_lo+1}, 0\ns_mov_b32 s{s+2}, {size}\ns_mov_b32 s{s+3}, 0x20000")

def rbf(k, d, s):
    k(f"v_cvt_pk_bf16_f32 v{d}, v{s}, v{s}\nv_and_b32 v{d}, 0xffff0000, v{d}")

def cmul(k, d, a, b):
    assert d != a and d != b and d % 2 == 0 and a % 2 == 0 and b % 2 == 0
    k(f"v_pk_mul_f32 v[{d}:{d+1}], v[{a}:{a+1}], v[{b}:{b+1}] op_sel:[0,0] op_sel_hi:[0,1]")
    k(f"v_pk_fma_f32 v[{d}:{d+1}], v[{a}:{a+1}], v[{b}:{b+1}], v[{d}:{d+1}] op_sel:[1,1,0] op_sel_hi:[1,0,1] neg_lo:[0,1,0]")

N_KG, N_GV, N_LN = 160, 60, 128
K1_GRID = N_KG + N_GV + N_LN
KG_WAVE_LDS = 57 * 272 + 112
K1_LDS = 4 * KG_WAVE_LDS

def role_ln(k, L_end):
    k(f"s_load_dwordx2 s[6:7], s[0:1], {KA['u']}")
    k(f"""
    v_and_b32 v2, 15, v0
    v_lshrrev_b32 v3, 4, v0
    s_lshl_b32 s21, s20, 4
    v_add_u32 v4, s21, v3
    v_mul_u32_u24 v1, 1280, v4
    v_lshl_add_u32 v1, v2, 4, v1
    s_waitcnt lgkmcnt(0)
    """)
    srd(k, 8, 6, 2048*1280)
    srd_off(k, 12, 4, WS_XP, 160*XP_STR)
    X, F, N = 8, 32, 72
    for c in range(5): k(f"buffer_load_dwordx4 v[{X+4*c}:{X+4*c+3}], v1, s[8:11], 0 offen offset:{256*c}")
    k("s_mov_b32 s22, 0x3f803f80\nv_mov_b32 v4, 0\nv_mov_b32 v5, 0\nv_mov_b32 v6, 0\nv_mov_b32 v7, 0")
    k("v_mul_u32_u24 v28, 272, v2\nv_lshl_add_u32 v28, v3, 4, v28")
    k(f"""
    v_lshrrev_b32 v29, 4, v0
    v_mul_u32_u24 v30, 272, v29
    v_and_b32 v31, 15, v0
    v_lshl_add_u32 v30, v31, 4, v30
    v_mul_u32_u24 v29, {2*XP_STR}, v29
    v_add_u32 v31, s21, v31
    v_lshl_add_u32 v29, v31, 4, v29
    """)
    for c in range(5):
        k(f"s_waitcnt vmcnt({4-c})")
        for i in range(4): k(f"v_dot2_f32_bf16 v{4+i}, v{X+4*c+i}, s22, v{4+i}")
    k("v_add_f32 v4, v4, v5\nv_add_f32 v6, v6, v7\nv_add_f32 v4, v4, v6")
    for sh in (8,4,2,1): k(f"v_add_f32_dpp v4, v4, v4 row_ror:{sh} row_mask:0xf bank_mask:0xf")
    k("v_mul_f32 v4, 0x3acccccd, v4")
    rbf(k, 6, 4)
    for i in range(20):
        k(f"v_lshlrev_b32 v{F+2*i}, 16, v{X+i}\nv_and_b32 v{F+2*i+1}, 0xffff0000, v{X+i}")
    k("v_mov_b32 v92, 0\nv_mov_b32 v93, 0\nv_mov_b32 v94, 0\nv_mov_b32 v95, 0")
    for i in range(20):
        k(f"v_pk_add_f32 v[{F+2*i}:{F+2*i+1}], v[{F+2*i}:{F+2*i+1}], v[6:7] op_sel:[0,0] op_sel_hi:[1,0] neg_lo:[0,1] neg_hi:[0,1]")
    for i in range(20):
        a = 92 + 2*(i % 2)
        k(f"v_pk_fma_f32 v[{a}:{a+1}], v[{F+2*i}:{F+2*i+1}], v[{F+2*i}:{F+2*i+1}], v[{a}:{a+1}]")
    k("v_pk_add_f32 v[92:93], v[92:93], v[94:95]\nv_add_f32 v92, v92, v93")
    for sh in (8,4,2,1): k(f"v_add_f32_dpp v92, v92, v92 row_ror:{sh} row_mask:0xf bank_mask:0xf")
    k("""
    v_sub_f32 v5, v4, v6
    v_mul_f32 v5, v5, v5
    v_mov_b32 v93, 0x3acccccd
    v_fma_f32 v92, v92, v93, -v5
    v_max_f32 v92, 0, v92
    """)
    rbf(k, 92, 92)
    k("v_add_f32 v92, 0x3727c5ac, v92")
    rbf(k, 92, 92)
    k("v_sqrt_f32 v92, v92")
    rbf(k, 92, 92)
    k("v_rcp_f32 v94, v92")
    for i in range(20):
        k(f"v_pk_mul_f32 v[{F+2*i}:{F+2*i+1}], v[{F+2*i}:{F+2*i+1}], v[94:95] op_sel:[0,0] op_sel_hi:[1,0]")
    for i in range(20):
        k(f"v_cvt_pk_bf16_f32 v{N+i}, v{F+2*i}, v{F+2*i+1}")
    for c in range(5):
        for h in range(2):
            o = c*16*272 + h*80*272
            k(f"ds_write_b64 v28, v[{N+4*c+2*h}:{N+4*c+2*h+1}] offset:{o}")
            k(f"ds_write_b64 v28, v[{X+4*c+2*h}:{X+4*c+2*h+1}] offset:{o+8}")
    k("s_waitcnt lgkmcnt(0)\ns_barrier")
    for i in range(10):
        k(f"ds_read_b128 v[{F+4*i}:{F+4*i+3}], v30 offset:{16*i*272}")
    for i in range(10):
        P0 = 32*i if i < 5 else 32*(i-5) + 1
        k(f"s_mov_b32 s23, {P0*XP_STR}")
        k(f"s_waitcnt lgkmcnt({9-i})")
        k(f"buffer_store_dwordx4 v[{F+4*i}:{F+4*i+3}], v29, s[12:15], s23 offen")
    k(f"s_branch {L_end}")

def role_gemv(k, L_end):
    k(f"s_load_dwordx2 s[6:7], s[0:1], {KA['wmod']}\ns_load_dwordx2 s[16:17], s[0:1], {KA['c']}")
    k(f"""
    v_lshrrev_b32 v2, 3, v0
    v_and_b32 v3, 7, v0
    v_mul_u32_u24 v1, 7680, v2
    v_lshl_add_u32 v1, v3, 4, v1
    s_lshl_b32 s21, s20, 7
    v_add_u32 v1, s21, v1
    v_lshlrev_b32 v4, 1, v0
    s_waitcnt lgkmcnt(0)
    """)
    srd(k, 8, 6, 640*7680)
    srd(k, 12, 16, 1280)
    W, S, A = 16, 96, 116
    for i in range(3): k(f"buffer_load_ushort v{5+i}, v4, s[12:15], 0 offen offset:{512*i}")
    for i in range(20):
        k(f"s_mov_b32 s22, {i*32*7680}")
        k(f"buffer_load_dwordx4 v[{W+4*i}:{W+4*i+3}], v1, s[8:11], s22 offen")
    k("v_lshlrev_b32 v8, 2, v0")
    k("s_waitcnt vmcnt(20)")
    for i in range(3):
        k(f"""
        v_lshlrev_b32 v{5+i}, 16, v{5+i}
        v_mul_f32 v9, 0xbfb8aa3b, v{5+i}
        v_exp_f32 v9, v9
        v_add_f32 v9, 1.0, v9
        v_rcp_f32 v9, v9
        v_mul_f32 v9, v{5+i}, v9
        """)
        rbf(k, 9, 9)
        k(f"ds_write_b32 v8, v9 offset:{1024*i}")
    k("s_waitcnt lgkmcnt(0)\ns_barrier")
    k("v_lshlrev_b32 v9, 2, v2")
    for i in range(20): k(f"ds_read_b32 v{S+i}, v9 offset:{128*i}")
    for e in range(8): k(f"v_mov_b32 v{A+e}, 0")
    k("s_waitcnt lgkmcnt(0)")
    for i in range(20):
        k(f"s_waitcnt vmcnt({19-i})")
        for d in range(4):
            k(f"v_lshlrev_b32 v124, 16, v{W+4*i+d}\nv_and_b32 v125, 0xffff0000, v{W+4*i+d}")
            s = S + i
            if s % 2 == 0:
                k(f"v_pk_fma_f32 v[{A+2*d}:{A+2*d+1}], v[124:125], v[{s}:{s+1}], v[{A+2*d}:{A+2*d+1}] op_sel:[0,0,0] op_sel_hi:[1,0,1]")
            else:
                k(f"v_pk_fma_f32 v[{A+2*d}:{A+2*d+1}], v[124:125], v[{s-1}:{s}], v[{A+2*d}:{A+2*d+1}] op_sel:[0,1,0] op_sel_hi:[1,1,1]")
    k("""
    v_lshlrev_b32 v9, 8, v2
    v_lshl_add_u32 v9, v3, 5, v9
    """)
    k(f"ds_write_b128 v9, v[{A}:{A+3}] offset:4096\nds_write_b128 v9, v[{A+4}:{A+7}] offset:4112")
    k("s_waitcnt lgkmcnt(0)\ns_barrier")
    k("v_cmp_gt_u32 vcc, 64, v0\ns_and_saveexec_b64 s[24:25], vcc")
    k(f"s_cbranch_execz {L_end}")
    k("v_lshlrev_b32 v9, 2, v0")
    for i in range(32): k(f"ds_read_b32 v{W+i}, v9 offset:{4096+256*i}")
    k("s_waitcnt lgkmcnt(0)")
    for st in (16, 8, 4, 2, 1):
        for i in range(st): k(f"v_add_f32 v{W+i}, v{W+i}, v{W+i+st}")
    rbf(k, W, W)
    srd_off(k, 12, 4, WS_MOD, 3840*4)
    k(f"s_lshl_b32 s21, s20, 8\nbuffer_store_dword v{W}, v9, s[12:15], s21 offen")
    k(f"s_branch {L_end}")

OUTER = [(0,c) for c in range(8)] + [(1,c) for c in range(8)] + [(2,c) for c in (0,2,4,6)] + [(3,c) for c in (0,2,4,6)] \
      + [(a,c) for a in (4,5,6,7) for c in (0,4)] + [(a,0) for a in range(8,17)]
assert len(OUTER) == 41

def role_kgen(k, L_end):
    k(f"""
    s_load_dwordx4 s[8:11], s[0:1], {KA['logA']}
    s_load_dwordx4 s[12:15], s[0:1], {KA['Cre']}
    s_load_dwordx2 s[16:17], s[0:1], {KA['logdt']}
    v_and_b32 v1, 63, v0
    s_lshl_b32 s21, s20, 2
    s_add_u32 s21, s21, s19          ; channel d
    s_lshl_b32 s22, s21, 8           ; d*256 bytes
    v_lshlrev_b32 v11, 1, v1
    s_lshl_b32 s23, s21, 1
    v_mov_b32 v12, s23
    s_waitcnt lgkmcnt(0)
    """)
    srd(k, 24, 8, 640*256); srd(k, 28, 10, 640*256); srd(k, 32, 12, 640*256); srd(k, 36, 14, 640*256); srd(k, 40, 16, 1280)
    k("buffer_load_ushort v10, v12, s[40:43], 0 offen")
    for h in range(2):
        for j, s in enumerate((24, 28, 32, 36)):
            k(f"buffer_load_ushort v{2+4*h+j}, v11, s[{s}:{s+3}], s22 offen offset:{128*h}")
    srd_off(k, 48, 4, WS_KX, 640*KX_STR)
    k(f"""
    s_mul_i32 s26_, s19, {KG_WAVE_LDS}
    """.replace('s26_', 's44'))
    k(f"""
    v_lshl_add_u32 v88, v1, 2, s44
    v_and_b32 v89, 15, v1
    v_mul_u32_u24 v90, 272, v89
    v_lshrrev_b32 v91, 4, v1
    v_lshl_add_u32 v90, v91, 4, v90
    v_add_u32 v90, s44, v90
    """)
    ACC = 76
    for i in range(12): k(f"v_mov_b32 v{ACC+i}, 0")
    k("s_waitcnt vmcnt(8)")
    k(f"v_lshlrev_b32 v10, 16, v10\nv_mul_f32 v10, 0x{LOG2E:x}, v10\nv_exp_f32 v10, v10")
    rbf(k, 10, 10)
    E1, E8, G, CP = 12, 14, 16, 18
    e = {1: E1, 2: 20, 3: 22, 4: 24, 5: 26, 6: 28, 7: 30}
    Iv = {1: E8, 2: 32, 3: 34, 4: 36, 5: 38, 6: 40, 7: 42, 8: 44}
    T0, B0, B1, T1, PK = 46, 48, 50, 52, 54
    def put(row, reg, conj):
        k(f"v_cvt_pk_bf16_f32 v{PK}, v{reg}, {'-' if conj else ''}v{reg+1}")
        k(f"ds_write_b32 v88, v{PK} offset:{row*272}")
    for h in range(2):
        p = 2 + 4*h
        if h == 0: k("s_waitcnt vmcnt(0)")
        for j in range(4): k(f"v_lshlrev_b32 v{p+j}, 16, v{p+j}")
        k(f"v_mul_f32 v55, 0x{LOG2E:x}, v{p}\nv_exp_f32 v55, v55")
        rbf(k, 55, 55)
        k(f"""
        v_mul_f32 v55, v55, v10
        v_mul_f32 v55, 0x{LOG2E ^ 0x80000000:x}, v55
        v_mul_f32 v56, v{p+1}, v10
        v_mul_f32 v56, 0x{INV2PI:x}, v56
        v_mul_f32 v{CP}, v{p+2}, v10
        v_mul_f32 v{CP+1}, v{p+3}, v10
        v_add_f32 v{CP}, v{CP}, v{CP}
        v_add_f32 v{CP+1}, v{CP+1}, v{CP+1}
        """)
        for reg, pw in ((E1, 1), (E8, 8), (G, 128)):
            lit = {1: '1.0', 8: '0x41000000', 128: '0x43000000'}[pw]
            k(f"""
            v_mul_f32 v57, {lit}, v55
            v_mul_f32 v58, {lit}, v56
            v_exp_f32 v57, v57
            v_fract_f32 v58, v58
            v_cos_f32 v59, v58
            v_sin_f32 v60, v58
            v_mul_f32 v{reg}, v57, v59
            v_mul_f32 v{reg+1}, v57, v60
            """)
        k(f"v_mov_b32 v{PK}, 0x00003f80\nds_write_b32 v88, v{PK} offset:{41*272}")
        put(42, Iv[1], False)
        for b, (x, y) in {2:(1,1), 3:(2,1), 4:(2,2), 5:(4,1), 6:(4,2), 7:(4,3), 8:(4,4)}.items():
            cmul(k, Iv[b], Iv[x], Iv[y]); put(41+b, Iv[b], False)
        for b in range(9, 16):
            cmul(k, T0, Iv[8], Iv[b-8]); put(41+b, T0, False)
        for c, (x, y) in {2:(1,1), 3:(2,1), 4:(2,2), 5:(4,1), 6:(4,2), 7:(4,3)}.items():
            cmul(k, e[c], e[x], e[y])
        cur, nxt = CP, B0
        row = 0
        for a in range(17):
            cs = [c for (aa, c) in OUTER if aa == a]
            for c in cs:
                assert OUTER[row] == (a, c)
                if c == 0: put(row, cur, True)
                else:
                    cmul(k, T1, cur, e[c]); put(row, T1, True)
                row += 1
            if a < 16:
                cmul(k, nxt, cur, G)
                cur, nxt = nxt, (B1 if nxt == B0 else B0)
        k("s_waitcnt lgkmcnt(0)")
        FR = 12
        for kk in range(4):
            k(f"ds_read_b128 v[{FR+16*kk}:{FR+16*kk+3}], v90 offset:{41*272 + 64*kk}")
            for T in range(3):
                k(f"ds_read_b128 v[{FR+16*kk+4+4*T}:{FR+16*kk+7+4*T}], v90 offset:{16*T*272 + 64*kk}")
        for kk in range(4):
            k(f"s_waitcnt lgkmcnt({12-4*kk})")
            for T in range(3):
                k(f"v_mfma_f32_16x16x32_bf16 v[{ACC+4*T}:{ACC+4*T+3}], v[{FR+16*kk+4+4*T}:{FR+16*kk+7+4*T}], v[{FR+16*kk}:{FR+16*kk+3}], v[{ACC+4*T}:{ACC+4*T+3}]")
    k(f"""
    v_mul_u32_u24 v12, 208, v89
    v_lshl_add_u32 v12, v91, 4, v12
    v_add_u32 v12, s44, v12
    """)
    for T in range(3): k(f"ds_write_b128 v12, v[{ACC+4*T}:{ACC+4*T+3}] offset:{64*T}")
    k(f"""
    v_add_u32 v13, 1, v1
    v_and_b32 v14, 15, v13          ; b''
    v_lshrrev_b32 v13, 4, v13       ; a'' (0..4)
    v_mul_u32_u24 v15, 208, v89
    v_add_u32 v15, s44, v15         ; base + b*208
    v_mul_u32_u24 v14, 208, v14
    v_add_u32 v14, s44, v14         ; base + b''*208
    ; set0: o0 = a<2 ? 8a : 8+4a
    v_lshlrev_b32 v16, 3, v91
    v_lshlrev_b32 v17, 2, v91
    v_add_u32 v17, 8, v17
    v_cmp_gt_u32 vcc, 2, v91
    v_cndmask_b32 v16, v17, v16, vcc
    v_lshl_add_u32 v16, v16, 2, v15
    v_lshlrev_b32 v17, 2, v13
    v_add_u32 v17, 8, v17
    v_lshl_add_u32 v17, v17, 2, v14
    v_lshl_add_u32 v18, v91, 3, v15
    v_lshl_add_u32 v19, v13, 3, v14
    v_lshl_add_u32 v20, v91, 2, v15
    v_lshl_add_u32 v21, v13, 2, v14
    s_waitcnt lgkmcnt(0)
    ds_read_b128 v[24:27], v16
    ds_read_b128 v[28:31], v16 offset:16
    ds_read_b32 v32, v17
    ds_read_b64 v[34:35], v18 offset:96
    ds_read_b32 v36, v19 offset:96
    ds_read_b32 v38, v20 offset:128
    ds_read_b32 v39, v21 offset:128
    ds_read_b32 v40, v20 offset:144
    ds_read_b32 v41, v21 offset:144
    v_sub_u32 v42, 255, v1
    v_lshlrev_b32 v42, 4, v42                ; (255 - lane)*16
    s_mul_i32 s45, s21, {KX_STR}
    v_cmp_gt_u32 vcc, 32, v1
    s_waitcnt lgkmcnt(6)
    v_cndmask_b32 v44, v24, v25, vcc         ; x1 = R0 ? v1 : v0
    v_cndmask_b32 v45, v25, v26, vcc         ; x2 = R0 ? v2 : v1
    v_cndmask_b32 v46, v26, v27, vcc         ; x3 = R0 ? v3 : v2
    v_cndmask_b32 v47, v26, v28, vcc         ; x4 = R0 ? v4 : v2
    v_cndmask_b32 v48, v26, v29, vcc         ; x5
    v_cndmask_b32 v49, v27, v30, vcc         ; x6 = R0 ? v6 : v3
    v_cndmask_b32 v50, v32, v31, vcc         ; x7 = R0 ? v7 : e'
    v_cvt_pk_bf16_f32 v52, v50, v49
    v_cvt_pk_bf16_f32 v53, v48, v47
    v_cvt_pk_bf16_f32 v54, v46, v45
    v_cvt_pk_bf16_f32 v55, v44, v24
    buffer_store_dwordx4 v[52:55], v42, s[48:51], s45 offen
    s_waitcnt lgkmcnt(4)
    ; set1: x = a,a,a,b,b,b,c,c
    v_cvt_pk_bf16_f32 v56, v36, v36
    v_cvt_pk_bf16_f32 v57, v35, v35
    v_cvt_pk_bf16_f32 v58, v35, v34
    v_cvt_pk_bf16_f32 v59, v34, v34
    """)
    k(f"""
    v_subrev_u32 v43, 1024, v42
    buffer_store_dwordx4 v[56:59], v43, s[48:51], s45 offen
    v_and_b32 v60, 1, v1
    v_cmp_eq_u32 vcc, 0, v60
    s_waitcnt lgkmcnt(0)
    v_cndmask_b32 v61, v39, v38, vcc         ; x4 = even ? a : b
    v_cvt_pk_bf16_f32 v64, v39, v39
    v_cvt_pk_bf16_f32 v65, v39, v61
    v_cvt_pk_bf16_f32 v66, v38, v38
    v_cvt_pk_bf16_f32 v67, v38, v38
    v_subrev_u32 v43, 2048, v42
    buffer_store_dwordx4 v[64:67], v43, s[48:51], s45 offen
    v_cndmask_b32 v61, v41, v40, vcc
    v_cvt_pk_bf16_f32 v68, v41, v41
    v_cvt_pk_bf16_f32 v69, v41, v61
    v_cvt_pk_bf16_f32 v70, v40, v40
    v_cvt_pk_bf16_f32 v71, v40, v40
    v_subrev_u32 v43, 3072, v42
    buffer_store_dwordx4 v[68:71], v43, s[48:51], s45 offen
    v_mov_b32 v72, 0
    v_mov_b32 v73, 0
    v_mov_b32 v74, 0
    v_mov_b32 v75, 0
    v_lshlrev_b32 v43, 4, v1
    v_add_u32 v43, 4096, v43
    v_cmp_gt_u32 vcc, 4, v1
    s_and_saveexec_b64 s[46:47], vcc
    buffer_store_dwordx4 v[72:75], v43, s[48:51], s45 offen
    """)
    k(f"s_branch {L_end}")

def make_k1(name="k1_kernel"):
    k = K(name, vgpr=128, sgpr=102)
    L_end, L_gv, L_ln, L_exit = name+"_end", name+"_gv", name+"_ln", name+"_exit"
    stamp_begin(k)
    k(f"""
    s_cmp_ge_u32 s2, {K1_GRID}
    s_cbranch_scc1 {L_exit}
    s_load_dwordx2 s[4:5], s[0:1], {KA['ws']}
    v_lshrrev_b32 v1, 6, v0
    s_nop 0
    v_readfirstlane_b32 s19, v1
    s_cmp_ge_u32 s2, {N_KG + N_GV}
    s_cbranch_scc1 {L_ln}
    s_cmp_ge_u32 s2, {N_KG}
    s_cbranch_scc1 {L_gv}
    s_mov_b32 s20, s2
    """)
    role_kgen(k, L_end)
    k(f"{L_gv}:\ns_sub_u32 s20, s2, {N_KG}")
    role_gemv(k, L_end)
    k(f"{L_ln}:\ns_sub_u32 s20, s2, {N_KG+N_GV}")
    role_ln(k, L_end)
    k(f"{L_end}:")
    stamp_end(k, 0)
    k(f"{L_exit}:\ns_endpgm")
    return k
```

```python
from asmgen import K
from layout import *
from k1 import srd, srd_off, rbf

N_CV, N_W1, N_WD = 160, 54, 30
K2_GRID = N_CV + N_W1 + N_WD
CH_STR = 4*4160 + 4608
K2_LDS = 4 * CH_STR + 1024
K2_LDS = 90112

def role_conv(k, L_end):
    k(f"""
    s_lshl_b32 s21, s20, 4
    s_add_u32 s22, s21, {WS_MOD}
    s_add_u32 s6, s4, s22
    s_addc_u32 s7, s5, 0
    s_load_dwordx4 s[24:27], s[6:7], 0          ; sa
    s_load_dwordx4 s[28:31], s[6:7], {640*4}    ; ca
    s_load_dwordx4 s[32:35], s[6:7], {2*640*4}  ; ga
    s_load_dwordx2 s[16:17], s[0:1], {KA['D']}
    v_and_b32 v1, 63, v0
    """)
    srd_off(k, 8, 4, WS_XP, 160*XP_STR)
    srd_off(k, 12, 4, WS_KX, 640*KX_STR)
    srd_off(k, 40, 4, WS_X2P, 160*X2_STR)
    XR, KR = 16, 48
    k(f"""
    s_mul_i32 s21, s20, {XP_STR}
    s_lshl_b32 s22, s19, 13
    s_add_u32 s21, s21, s22
    v_lshlrev_b32 v2, 5, v1                 ; lane*32
    s_lshl_b32 s23, s20, 2
    s_add_u32 s23, s23, s19
    s_mul_i32 s23, s23, {KX_STR}
    v_lshlrev_b32 v3, 4, v1                 ; lane*16
    """)
    for j in range(4):
        for r in range(2):
            o = j*2048 + r*16
            k(f"buffer_load_dwordx4 v[{XR+8*j+4*r}:{XR+8*j+4*r+3}], v2, s[8:11], s21 offen offset:{o}" if o < 4096 else
              f"s_add_u32 s36, s21, {j*2048}\nbuffer_load_dwordx4 v[{XR+8*j+4*r}:{XR+8*j+4*r+3}], v2, s[8:11], s36 offen offset:{r*16}")
    for jj in range(4):
        for t in range(3):
            k(f"buffer_load_dwordx4 v[{KR+12*jj+4*t}:{KR+12*jj+4*t+3}], v3, s[12:15], s23 offen offset:{jj*1024+4*t}")
    k("s_waitcnt lgkmcnt(0)")
    k(f"s_lshl_b32 s36, s20, 3\ns_add_u32 s16, s16, s36\ns_addc_u32 s17, s17, 0\ns_load_dwordx2 s[36:37], s[16:17], 0")
    for c in range(4):
        k(f"v_add_f32 v{4+c}, 1.0, s{28+c}")
        rbf(k, 4+c, 4+c)
        k(f"v_mov_b32 v{8+c}, s{24+c}")
    k(f"""
    s_mul_i32 s38, s19, {CH_STR}
    v_lshlrev_b32 v12, 2, v1                ; lane*4
    s_lshl_b32 s39, s19, 10
    v_add_u32 v12, s39, v12
    v_add_u32 v12, {16640+512}, v12
    v_add_u32 v13, s38, v3
    """)
    HP = 96
    T = 112
    k("s_waitcnt vmcnt(12)")
    for j in range(4):
        for r in range(2):
            x = XR + 8*j + 4*r
            t = T + 4*r
            k(f"""
            v_lshlrev_b32 v{t}, 16, v{x}
            v_and_b32 v{t+1}, 0xffff0000, v{x}
            v_lshlrev_b32 v{t+2}, 16, v{x+1}
            v_and_b32 v{t+3}, 0xffff0000, v{x+1}
            v_pk_fma_f32 v[{t}:{t+1}], v[{t}:{t+1}], v[4:5], v[8:9]
            v_pk_fma_f32 v[{t+2}:{t+3}], v[{t+2}:{t+3}], v[6:7], v[10:11]
            """)
        for c in range(4):
            k(f"v_cvt_pk_bf16_f32 v{HP+4*j+c}, v{T+c}, v{T+4+c}")
            k(f"ds_write_b32 v12, v{HP+4*j+c} offset:{c*CH_STR + j*256}")
    k(f"""
    v_mov_b32 v{T}, 0
    v_mov_b32 v{T+1}, 0
    v_mov_b32 v{T+2}, 0
    v_mov_b32 v{T+3}, 0
    v_lshlrev_b32 v14, 3, v1
    v_add_u32 v14, s38, v14
    ds_write_b64 v14, v[{T}:{T+1}] offset:16640
    """)
    k(f"""
    v_lshrrev_b32 v14, 1, v1
    v_mul_u32_u24 v14, 4160, v14
    v_and_b32 v15, 1, v1
    v_lshl_add_u32 v14, v15, 4, v14
    v_add_u32 v14, s38, v14
    v_cmp_gt_u32 vcc, 8, v1
    s_and_saveexec_b64 s[44:45], vcc
    ds_write_b128 v14, v[{T}:{T+3}] offset:4096
    s_mov_b64 exec, s[44:45]
    """)
    for jj in range(4):
        k(f"s_waitcnt vmcnt({9-3*jj})")
        A, B, C = KR+12*jj, KR+12*jj+4, KR+12*jj+8
        o1, o3 = T+4, T+8
        for i in range(4): k(f"v_alignbit_b32 v{o1+i}, v{B+i}, v{A+i}, 16")
        for i in range(4): k(f"v_alignbit_b32 v{o3+i}, v{C+i}, v{B+i}, 16")
        k(f"ds_write_b128 v13, v[{A}:{A+3}] offset:{0*4160 + jj*1024}")
        k(f"ds_write_b128 v13, v[{o1}:{o1+3}] offset:{1*4160 + jj*1024}")
        k(f"ds_write_b128 v13, v[{B}:{B+3}] offset:{2*4160 + jj*1024}")
        k(f"ds_write_b128 v13, v[{o3}:{o3+3}] offset:{3*4160 + jj*1024}")
    k(f"""
    v_and_b32 v14, 15, v1                   ; r / n
    v_lshrrev_b32 v15, 4, v1                ; ks
    v_and_b32 v{T}, 3, v14
    v_sub_u32 v{T}, 3, v{T}
    v_mul_u32_u24 v{T}, 4160, v{T}
    v_lshrrev_b32 v{T+1}, 2, v14            ; r>>2
    v_lshlrev_b32 v{T+1}, 3, v{T+1}         ; 2*4*(r>>2)
    v_sub_u32 v{T}, v{T}, v{T+1}
    v_lshrrev_b32 v{T+2}, 1, v15            ; ks>>1
    v_lshlrev_b32 v{T+2}, 5, v{T+2}         ; 2*16*(ks>>1)
    v_and_b32 v{T+3}, 1, v15
    v_lshlrev_b32 v{T+3}, 4, v{T+3}         ; 2*8*(ks&1)
    v_sub_u32 v{T+3}, v{T+3}, v{T+2}
    v_add_u32 v{T}, v{T}, v{T+3}
    v_add_u32 v{T}, {2*2044 - 64*63}, v{T}
    v_add_u32 v2, s38, v{T}                 ; vA
    v_lshlrev_b32 v{T}, 5, v14              ; 32*n
    v_add_u32 v{T}, v{T}, v{T+3}
    v_add_u32 v{T}, {16640 + 512 - 448}, v{T}
    v_add_u32 v3, s38, v{T}                 ; vB
    """)
    k("s_waitcnt lgkmcnt(0)\ns_barrier")
    ACC = 112
    S0, S1 = 144, 48
    S = [144, 208 - 160]
    S = [144, 48]
    SETS = [(144, 176), (208, 48)]
    def reads(b, s):
        Ab, Bb = SETS[s]; L = []
        for a in range(8):
            p = 8*a + b
            L.append(f"ds_read_b64 v[{Ab+4*a}:{Ab+4*a+1}], v2 offset:{64*(63-p)}")
            L.append(f"ds_read_b64 v[{Ab+4*a+2}:{Ab+4*a+3}], v2 offset:{64*(63-p)+8}")
            L.append(f"ds_read_b128 v[{Bb+4*a}:{Bb+4*a+3}], v3 offset:{512*a + 64*(7-b)}")
        return L
    for l in reads(0, 0): k(l)
    for i in range(32): k(f"v_mov_b32 v{ACC+i}, 0")
    for b in range(8):
        s = b & 1
        Ab, Bb = SETS[s]
        nxt = reads(b+1, s ^ 1) if b < 7 else []
        k("s_waitcnt lgkmcnt(0)")
        n = 0
        for a in range(8):
            for t in range(a, 8):
                m = t - a
                k(f"v_mfma_f32_16x16x32_bf16 v[{ACC+4*t}:{ACC+4*t+3}], v[{Ab+4*a}:{Ab+4*a+3}], v[{Bb+4*m}:{Bb+4*m+3}], v[{ACC+4*t}:{ACC+4*t+3}]")
                if n < len(nxt): k(nxt[n])
                n += 1
    stamp_mid(k, 1)
    k(f"""
    v_lshlrev_b32 v2, 6, v14
    v_lshl_add_u32 v2, v15, 4, v2
    v_add_u32 v2, s38, v2
    """)
    for t in range(8): k(f"ds_write_b128 v2, v[{ACC+4*t}:{ACC+4*t+3}] offset:{1024*t}")
    k(f"""
    v_lshlrev_b32 v3, 3, v1                 ; lane*8
    s_lshl_b32 s39, s19, 11                 ; wave*512*4
    v_add_u32 v3, s39, v3
    s_lshl_b32 s46, s36, 16
    s_and_b32 s47, s36, 0xffff0000
    s_lshl_b32 s48, s37, 16
    s_and_b32 s49, s37, 0xffff0000
    s_mul_i32 s21, s20, {X2_STR}
    s_lshl_b32 s22, s19, 12
    s_add_u32 s21, s21, s22
    v_lshlrev_b32 v4, 4, v1
    s_waitcnt lgkmcnt(0)
    s_barrier
    """)
    Y = 144
    for j in range(4):
        for c in range(4):
            k(f"ds_read_b64 v[{Y+8*j+2*c}:{Y+8*j+2*c+1}], v3 offset:{c*CH_STR + j*512}")
    for j in range(4):
        k(f"s_waitcnt lgkmcnt({12-4*j})")
        O = 176 + 4*j
        for c in range(4):
            y = Y + 8*j + 2*c
            h = 6; x = 8 + 2*c
            k(f"v_lshlrev_b32 v{h}, 16, v{HP+4*j+c}\nv_and_b32 v{h+1}, 0xffff0000, v{HP+4*j+c}")
            sD = 46 + c
            sp = sD & ~1
            sel = sD & 1
            k(f"v_pk_fma_f32 v[{y}:{y+1}], v[{h}:{h+1}], s[{sp}:{sp+1}], v[{y}:{y+1}] op_sel:[0,{sel},0] op_sel_hi:[1,{sel},1]")
            for r in range(2):
                src = XR + 8*j + 4*r + 2 + (c >> 1)
                if c & 1: k(f"v_and_b32 v{x+r}, 0xffff0000, v{src}")
                else: k(f"v_lshlrev_b32 v{x+r}, 16, v{src}")
            sG = 32 + c; sp = sG & ~1; sel = sG & 1
            k(f"v_pk_fma_f32 v[{x}:{x+1}], v[{y}:{y+1}], s[{sp}:{sp+1}], v[{x}:{x+1}] op_sel:[0,{sel},0] op_sel_hi:[1,{sel},1]")
        for r in range(2):
            k(f"v_cvt_pk_bf16_f32 v{O+2*r}, v{8+r}, v{10+r}\nv_cvt_pk_bf16_f32 v{O+2*r+1}, v{12+r}, v{14+r}")
        k(f"buffer_store_dwordx4 v[{O}:{O+3}], v4, s[40:43], s21 offen offset:{1024*j}")
    k(f"s_branch {L_end}")

def role_w1(k, L_end):
    k(f"""
    s_and_b32 s21, s20, 1
    s_lshr_b32 s22, s20, 1
    s_lshl_b32 s23, s21, 3
    s_add_u32 s6, s0, s23
    s_addc_u32 s7, s1, 0
    s_load_dwordx2 s[6:7], s[6:7], {KA['wg']}
    v_and_b32 v1, 63, v0
    v_lshrrev_b32 v2, 3, v1
    v_and_b32 v3, 7, v1
    v_mul_u32_u24 v4, 3456, v2
    v_lshl_add_u32 v4, v3, 4, v4
    s_lshl_b32 s23, s22, 7
    s_mul_i32 s24, s19, {8*3456}
    s_add_u32 s23, s23, s24
    v_add_u32 v4, s23, v4
    s_waitcnt lgkmcnt(0)
    """)
    srd(k, 8, 6, 640*3456)
    srd_off(k, 12, 4, WS_MOD + 3*640*4, 2*640*4)
    srd_off(k, 40, 4, WS_W1F, 108*W1_USTR)
    CB, SB, PS, TILE = 0, 3072, 3072 + 1536, 8704
    k("v_lshlrev_b32 v5, 2, v0")
    for i in range(3):
        k(f"buffer_load_dword v{6+i}, v5, s[12:15], 0 offen offset:{1024*i}")
    k("s_mov_b32 s26, 2560")
    for i in range(3):
        k(f"buffer_load_dword v{9+i}, v5, s[12:15], s26 offen offset:{1024*i}")
    k("s_lshl_b32 s25, s19, 10")
    for ii in range(20):
        k(f"s_add_u32 m0, s25, {TILE + ii*4096}\ns_mov_b32 s26, {ii*32*3456}\nbuffer_load_dwordx4 v4, s[8:11], s26 offen lds")
    k("v_lshlrev_b32 v12, 1, v0\ns_waitcnt vmcnt(20)")
    for i in range(3):
        k(f"v_add_f32 v{9+i}, 1.0, v{9+i}")
        rbf(k, 9+i, 9+i)
        k(f"ds_write_b32 v5, v{9+i} offset:{CB+1024*i}")
        k(f"v_lshrrev_b32 v{6+i}, 16, v{6+i}\nds_write_b16 v12, v{6+i} offset:{SB+512*i}")
    k(f"""
    v_lshrrev_b32 v13, 4, v1               ; g
    v_and_b32 v14, 1, v13                  ; ub
    v_lshrrev_b32 v15, 1, v13              ; hi
    v_and_b32 v16, 15, v1                  ; c
    v_lshrrev_b32 v17, 2, v16
    v_lshl_add_u32 v17, v15, 3, v17        ; 8hi + (c>>2)
    v_lshlrev_b32 v17, 7, v17
    v_and_b32 v18, 3, v1
    v_lshlrev_b32 v18, 3, v18
    v_lshl_add_u32 v18, v14, 5, v18
    v_add_u32 v17, v17, v18
    s_lshl_b32 s25, s19, 11
    s_add_u32 s25, s25, {TILE}
    v_add_u32 v17, s25, v17
    v_add_u32 v18, 40960, v17              ; vT2
    v_lshlrev_b32 v19, 5, v15
    s_lshl_b32 s25, s19, 6
    v_add_u32 v19, s25, v19
    v_lshrrev_b32 v20, 1, v19
    v_mul_u32_u24 v21, {W1_USTR}, v14
    v_lshl_add_u32 v21, v15, 9, v21
    v_lshl_add_u32 v21, v16, 4, v21
    s_lshl_b32 s25, s21, 8
    s_mul_i32 s26, s22, {4*W1_USTR}
    s_add_u32 s25, s25, s26
    s_lshl_b32 s26, s19, 10
    s_add_u32 s25, s25, s26
    v_add_u32 v21, s25, v21
    s_mov_b32 s27, 0x3f803f80
    v_mov_b32 v24, 0
    v_mov_b32 v25, 0
    v_mov_b32 v26, 0
    v_mov_b32 v27, 0
    s_waitcnt vmcnt(0) lgkmcnt(0)
    s_barrier
    """)
    for ii in range(10):
        base = 17 if ii < 5 else 18
        o = (ii % 5) * 8192
        R = 32 + (ii & 1) * 32
        cb, sbp = R, R + 8
        k(f"ds_read_b128 v[{cb}:{cb+3}], v19 offset:{CB + ii*256}\nds_read_b128 v[{cb+4}:{cb+7}], v19 offset:{CB + ii*256 + 16}")
        k(f"ds_read_b128 v[{sbp}:{sbp+3}], v20 offset:{SB + ii*128}")
        for ch2 in range(2):
            w = R + 12 + 4*ch2
            k(f"ds_read_b64_tr_b16 v[{w}:{w+1}], v{base} offset:{o + ch2*64}\nds_read_b64_tr_b16 v[{w+2}:{w+3}], v{base} offset:{o + ch2*64 + 512}")
        for ch2 in range(2):
            w = R + 12 + 4*ch2
            f = R + 20
            out = 28 if ch2 == 0 else 96
            k(f"s_waitcnt lgkmcnt({2 - 2*ch2})")
            for i in range(4):
                k(f"v_lshlrev_b32 v{f+2*i}, 16, v{w+i}\nv_and_b32 v{f+2*i+1}, 0xffff0000, v{w+i}")
            for i in range(4):
                k(f"v_pk_mul_f32 v[{f+2*i}:{f+2*i+1}], v[{f+2*i}:{f+2*i+1}], v[{cb+2*i}:{cb+2*i+1}]")
            for i in range(4):
                k(f"v_cvt_pk_bf16_f32 v{out+i}, v{f+2*i}, v{f+2*i+1}")
            for i in range(4):
                k(f"v_dot2_f32_bf16 v{25+2*ch2}, v{w+i}, v{sbp+i}, v{25+2*ch2}")
            for i in range(4):
                k(f"v_dot2_f32_bf16 v{24+2*ch2}, v{out+i}, s27, v{24+2*ch2}")
            k(f"s_mov_b32 s26, {2*ch2*W1_USTR + ii*4096}")
            k(f"buffer_store_dwordx4 v[{out}:{out+3}], v21, s[40:43], s26 offen")
    k(f"""
    v_lshlrev_b32 v5, 2, v1
    s_lshl_b32 s25, s19, 10
    v_add_u32 v5, s25, v5
    """)
    for i in range(4): k(f"ds_write_b32 v5, v{24+i} offset:{PS + 256*i}")
    k("s_waitcnt lgkmcnt(0)\ns_barrier")
    k(f"v_cmp_gt_u32 vcc, 64, v0\ns_and_saveexec_b64 s[44:45], vcc\ns_cbranch_execz {L_end}")
    k(f"""
    v_lshrrev_b32 v6, 5, v1                ; ch2
    v_lshlrev_b32 v6, 9, v6                ; ch2*512
    v_and_b32 v7, 31, v1
    v_lshl_add_u32 v6, v7, 2, v6
    """)
    for tt in range(2):
        for w in range(4):
            for hi in range(2):
                k(f"ds_read_b32 v{32+tt*8+w*2+hi}, v6 offset:{PS + w*1024 + tt*256 + hi*128}")
    k("s_waitcnt lgkmcnt(0)")
    for tt in range(2):
        b = 32 + tt*8
        for st in (4, 2, 1):
            for i in range(st): k(f"v_add_f32 v{b+i}, v{b+i}, v{b+i+st}")
        rbf(k, 50, b)
        k(f"v_sub_f32 v51, v{b}, v50\nv_cvt_pk_bf16_f32 v{52+tt}, v50, v51")
    k(f"""
    v_mov_b32 v54, 0
    v_mov_b32 v55, 0
    v_mov_b32 v56, 0
    v_mov_b32 v57, 0
    v_mov_b32 v58, 0
    v_mov_b32 v59, 0
    v_lshrrev_b32 v8, 4, v1
    v_mul_u32_u24 v8, {W1_USTR}, v8
    v_and_b32 v9, 15, v1
    v_lshl_add_u32 v8, v9, 4, v8
    s_lshl_b32 s25, s21, 8
    s_mul_i32 s26, s22, {4*W1_USTR}
    s_add_u32 s25, s25, s26
    s_add_u32 s25, s25, {40*1024}
    buffer_store_dwordx4 v[52:55], v8, s[40:43], s25 offen
    buffer_store_dwordx4 v[56:59], v8, s[40:43], s25 offen offset:512
    """)
    k(f"s_branch {L_end}")

def role_wd(k, L_end):
    k(f"""
    s_load_dwordx2 s[6:7], s[0:1], {KA['wd']}
    s_mul_hi_u32 s22, s20, {(2**32 + 9)//10}   ; R
    s_mul_i32 s23, s22, 10
    s_sub_u32 s21, s20, s23                    ; Q
    v_and_b32 v1, 63, v0
    v_lshrrev_b32 v2, 3, v1
    v_and_b32 v3, 7, v1
    v_mul_u32_u24 v4, 1280, v2
    v_lshl_add_u32 v4, v3, 4, v4
    s_lshl_b32 s23, s21, 7
    s_mul_i32 s24, s22, {576*1280}
    s_add_u32 s23, s23, s24
    s_mul_i32 s24, s19, {8*1280}
    s_add_u32 s23, s23, s24
    v_add_u32 v4, s23, v4
    s_waitcnt lgkmcnt(0)
    """)
    srd(k, 8, 6, 1728*1280)
    srd_off(k, 40, 4, WS_WDF, 40*54*1024)
    k("s_lshl_b32 s25, s19, 10")
    for ii in range(18):
        k(f"s_add_u32 m0, s25, {ii*4096}\ns_mov_b32 s26, {ii*32*1280}\nbuffer_load_dwordx4 v4, s[8:11], s26 offen lds")
    k(f"""
    v_lshrrev_b32 v13, 4, v1               ; ks
    v_lshrrev_b32 v14, 1, v13
    v_lshlrev_b32 v14, 4, v14              ; 16*(ks>>1)
    v_and_b32 v15, 1, v13
    v_lshl_add_u32 v14, v15, 2, v14        ; + 4*(ks&1)
    v_and_b32 v16, 15, v1
    v_lshrrev_b32 v16, 2, v16
    v_add_u32 v14, v14, v16
    v_lshlrev_b32 v14, 7, v14
    v_and_b32 v16, 3, v1
    v_lshl_add_u32 v14, v16, 3, v14
    s_lshl_b32 s25, s19, 5
    v_add_u32 v17, s25, v14                ; vT
    v_add_u32 v18, 36864, v17              ; J' >= 9
    v_lshlrev_b32 v21, 4, v1
    s_lshl_b32 s25, s21, 2
    s_add_u32 s25, s25, s19
    s_mul_i32 s25, s25, 54
    s_mul_i32 s26, s22, 18
    s_add_u32 s25, s25, s26
    s_lshl_b32 s25, s25, 10
    s_waitcnt vmcnt(0)
    s_barrier
    """)
    for third in range(3):
        for j in range(6):
            w = 32 + 4*j; J = third*6 + j
            bs = 17 if J < 9 else 18; o = (J % 9) * 4096
            k(f"ds_read_b64_tr_b16 v[{w}:{w+1}], v{bs} offset:{o}\nds_read_b64_tr_b16 v[{w+2}:{w+3}], v{bs} offset:{o+1024}")
        for j in range(6):
            w = 32 + 4*j; J = third*6 + j
            k(f"s_waitcnt lgkmcnt({10-2*j})")
            k(f"s_add_u32 s26, s25, {J*1024}")
            k(f"buffer_store_dwordx4 v[{w}:{w+3}], v21, s[40:43], s26 offen")
    k(f"s_branch {L_end}")

def make_k2(name="k2_kernel"):
    k = K(name, vgpr=256, sgpr=102)
    L_end, L_w1, L_wd, L_exit = name+"_end", name+"_w1", name+"_wd", name+"_exit"
    stamp_begin(k)
    k(f"""
    s_cmp_ge_u32 s2, {K2_GRID}
    s_cbranch_scc1 {L_exit}
    s_load_dwordx2 s[4:5], s[0:1], {KA['ws']}
    v_lshrrev_b32 v1, 6, v0
    s_nop 0
    v_readfirstlane_b32 s19, v1
    s_waitcnt lgkmcnt(0)
    s_cmp_ge_u32 s2, {N_CV + N_W1}
    s_cbranch_scc1 {L_wd}
    s_cmp_ge_u32 s2, {N_CV}
    s_cbranch_scc1 {L_w1}
    s_mov_b32 s20, s2
    """)
    role_conv(k, L_end)
    k(f"{L_w1}:\ns_sub_u32 s20, s2, {N_CV}")
    role_w1(k, L_end)
    k(f"{L_wd}:\ns_sub_u32 s20, s2, {N_CV+N_W1}")
    role_wd(k, L_end)
    k(f"{L_end}:")
    stamp_end(k, 1)
    k(f"{L_exit}:\ns_endpgm")
    return k
K2_LDS = 90624
```

```python
from asmgen import K
from layout import *
from k1 import srd, srd_off, rbf
import struct

def f2h(x): return '0x%08x' % struct.unpack('<I', struct.pack('<f', x))[0]

K3_GRID = 256
STG = 28672
K3_LDS = 4 * STG
GC0 = -2.0 * 0.7978845608028654 * 1.4426950408889634
GC1 = GC0 * 0.044715

def make_k3(name="k3_kernel"):
    k = K(name, vgpr=512, sgpr=102, accum=256)
    L_end, L_exit = name+"_end", name+"_exit"
    stamp_begin(k)
    k(f"""
    s_cmp_ge_u32 s2, {K3_GRID}
    s_cbranch_scc1 {L_exit}
    s_load_dwordx2 s[4:5], s[0:1], {KA['ws']}
    v_lshrrev_b32 v1, 6, v0
    s_nop 0
    v_readfirstlane_b32 s19, v1
    s_and_b32 s20, s2, 7
    s_lshr_b32 s21, s2, 3
    s_and_b32 s22, s20, 1
    s_lshl_b32 s22, s22, 3
    s_and_b32 s23, s21, 7
    s_add_u32 s22, s22, s23            ; rb
    s_lshr_b32 s23, s20, 1
    s_lshl_b32 s23, s23, 2
    s_lshr_b32 s24, s21, 3
    s_add_u32 s23, s23, s24            ; cg
    s_mul_i32 s23, s23, 7
    s_min_u32 s23, s23, 101            ; U0
    v_and_b32 v1, 63, v0
    v_and_b32 v2, 31, v1               ; m
    v_lshrrev_b32 v3, 5, v1            ; hi
    s_waitcnt lgkmcnt(0)
    """)
    srd_off(k, 8, 4, WS_X2P, 160*X2_STR)
    srd_off(k, 12, 4, WS_W1F, 108*W1_USTR)
    srd_off(k, 40, 4, WS_HF, 128*54*1024)
    VB0, VB1, VW, VA = 4, 5, 6, 7
    k(f"""
    s_lshl_b32 s24, s22, 7
    s_lshl_b32 s25, s19, 5
    s_add_u32 s24, s24, s25            ; m0
    v_add_u32 v8, s24, v2
    v_lshlrev_b32 v8, 3, v8
    v_mul_u32_u24 v9, {2*X2_STR}, v3
    v_add_u32 v{VB0}, v8, v9
    v_add_u32 v{VB1}, {X2_STR}, v{VB0}
    s_mul_i32 s25, s23, {W1_USTR}
    s_lshl_b32 s26, s19, 10
    s_add_u32 s25, s25, s26
    v_lshlrev_b32 v{VA}, 4, v1
    v_add_u32 v{VW}, s25, v{VA}
    s_mul_i32 s27, s19, {7*1024}
    """)
    ACC = 16
    BR = 128
    AF = [0, 28]
    S1, S2 = 192, 194
    def issue(s):
        if s <= 9:
            for i in range(4):
                kk = 4*s + i; r = BR + 16*(s % 4) + 4*i
                k(f"s_mov_b32 s28, {4*kk*X2_STR}")
                k(f"buffer_load_dwordx2 v[{r}:{r+1}], v{VB0}, s[8:11], s28 offen")
                k(f"buffer_load_dwordx2 v[{r+2}:{r+3}], v{VB1}, s[8:11], s28 offen")
        if s <= 9:
            for j in range(7):
                k(f"s_add_u32 m0, s27, {(s % 4)*STG + j*1024}\ns_mov_b32 s28, {s*4096 + j*W1_USTR}")
                k(f"buffer_load_dwordx4 v{VW}, s[12:15], s28 offen lds")
        if s == 10:
            Ls = k.label('skipext')
            k(f"s_cmp_lg_u32 s19, 0\ns_cbranch_scc1 {Ls}")
            for j in range(7):
                k(f"s_add_u32 m0, s27, {(s % 4)*STG + j*1024}\ns_mov_b32 s28, {s*4096 + j*W1_USTR}")
                k(f"buffer_load_dwordx4 v{VW}, s[12:15], s28 offen lds")
            k(f"{Ls}:")
    def areads(kk):
        s, i = kk // 4, kk % 4
        a = AF[kk & 1]
        L = []
        for j in range(7):
            off = (s % 4)*STG + (i*7 + j)*1024
            reg = f"v{VA}" if off < 65536 else f"v{VA+1}"
            if off >= 65536: off -= 65536
            L.append(f"ds_read_b128 a[{a+4*j}:{a+4*j+3}], {reg} offset:{off}")
        return L
    k(f"v_add_u32 v{VA+1}, 65536, v{VA}")
    issue(0); issue(1)
    for i in range(112): k(f"v_mov_b32 v{ACC+i}, 0")
    for i in range(4): k(f"v_mov_b32 v{S1+i}, 0")
    k("s_mov_b32 s29, 0x3f803f80")
    k("s_waitcnt vmcnt(15)\ns_barrier")
    stamp_mid(k, 0)
    issue(2)
    for l in areads(0): k(l)
    for kk in range(41):
        s, i = kk // 4, kk % 4
        a = AF[kk & 1]
        if kk == 40:
            k(f"""
            v_add_f32 v{S1}, v{S1}, v{S1+1}
            v_add_f32 v{S2}, v{S2}, v{S2+1}
            v_mov_b32 v200, v{S1}
            v_mov_b32 v201, v{S2}
            v_permlane32_swap_b32 v{S1}, v200
            v_permlane32_swap_b32 v{S2}, v201
            v_add_f32 v{S1}, v{S1}, v200
            v_add_f32 v{S2}, v{S2}, v201
            v_mul_f32 v{S1}, 0x3acccccd, v{S1}
            v_mul_f32 v{S2}, 0x3acccccd, v{S2}
            v_fma_f32 v{S2}, -v{S1}, v{S1}, v{S2}
            v_max_f32 v{S2}, 0, v{S2}
            """)
            rbf(k, S2, S2)
            k(f"v_add_f32 v{S2}, 0x3727c5ac, v{S2}")
            rbf(k, S2, S2)
            k(f"v_sqrt_f32 v{S2}, v{S2}")
            k(f"""
            v_cvt_pk_bf16_f32 v197, v{S2}, v{S2}
            v_cvt_pk_bf16_f32 v196, -v{S1}, -v{S1}        ; (-m, -m)
            v_and_b32 v202, 0xffff0000, v197
            v_rcp_f32 v202, v202                          ; rs
            v_cmp_eq_u32 vcc, 0, v3
            v_cndmask_b32 v196, 0, v196, vcc
            v_cndmask_b32 v197, 0, v197, vcc
            v_mov_b32 v198, 0
            v_mov_b32 v199, 0
            """)
            b = 196
        else:
            b = BR + 16*(s % 4) + 4*i
        if i == 3 and s <= 9:
            if s + 1 <= 9: k("s_waitcnt vmcnt(15)" if s + 2 <= 9 else "s_waitcnt vmcnt(0)")
            else: k("s_waitcnt vmcnt(0)")
            k("s_barrier")
            if s + 3 <= 10: issue(s + 3)
        nxt = areads(kk + 1) if kk < 40 else []
        k("s_waitcnt lgkmcnt(0)")
        dots = []
        if kk < 40:
            for q in range(4):
                dots.append(f"v_dot2_f32_bf16 v{S1+(q&1)}, v{b+q}, s29, v{S1+(q&1)}")
                dots.append(f"v_dot2_f32_bf16 v{S2+(q&1)}, v{b+q}, v{b+q}, v{S2+(q&1)}")
        for j in range(7):
            k(f"v_mfma_f32_32x32x16_bf16 v[{ACC+16*j}:{ACC+16*j+15}], a[{a+4*j}:{a+4*j+3}], v[{b}:{b+3}], v[{ACC+16*j}:{ACC+16*j+15}]")
            if j < len(nxt): k(nxt[j])
            if dots: k(dots.pop(0))
        for dl in dots: k(dl)
    stamp_mid(k, 1)
    k(f"""
    v_lshrrev_b32 v8, 4, v2                 ; (l&31)>>4
    v_mul_u32_u24 v8, {54*1024}, v8
    v_lshl_add_u32 v8, v3, 8, v8
    v_and_b32 v9, 15, v1
    v_lshl_add_u32 v8, v9, 4, v8
    s_lshl_b32 s24, s22, 3
    s_lshl_b32 s25, s19, 1
    s_add_u32 s24, s24, s25
    s_mul_i32 s24, s24, {54*1024}
    v_add_u32 v8, s24, v8
    s_lshl_b32 s25, s23, 9                  ; U0*512
    s_mov_b32 s30, {f2h(GC1)}
    s_mov_b32 s31, {f2h(GC1)}
    v_mov_b32 v10, {f2h(GC0)}
    v_mov_b32 v11, {f2h(GC0)}
    """)
    T = 204
    for j in range(7):
        A = ACC + 16*j
        O = 240 + 4*(j & 1)
        for pr in range(4):
            g = A + 2*pr; u = A + 8 + 2*pr
            t = T + 8*(pr & 1)
            k(f"""
            v_pk_mul_f32 v[{g}:{g+1}], v[{g}:{g+1}], v[202:203] op_sel:[0,0] op_sel_hi:[1,0]
            v_pk_mul_f32 v[{u}:{u+1}], v[{u}:{u+1}], v[202:203] op_sel:[0,0] op_sel_hi:[1,0]
            v_pk_mul_f32 v[{t}:{t+1}], v[{g}:{g+1}], v[{g}:{g+1}]
            v_pk_fma_f32 v[{t}:{t+1}], v[{t}:{t+1}], s[30:31], v[10:11]
            v_pk_mul_f32 v[{t}:{t+1}], v[{t}:{t+1}], v[{g}:{g+1}]
            v_exp_f32 v{t}, v{t}
            v_exp_f32 v{t+1}, v{t+1}
            v_pk_mul_f32 v[{g}:{g+1}], v[{g}:{g+1}], v[{u}:{u+1}]
            v_pk_add_f32 v[{t}:{t+1}], v[{t}:{t+1}], 1.0 op_sel_hi:[1,0]
            v_rcp_f32 v{t}, v{t}
            v_rcp_f32 v{t+1}, v{t+1}
            v_pk_mul_f32 v[{g}:{g+1}], v[{g}:{g+1}], v[{t}:{t+1}]
            v_cvt_pk_bf16_f32 v{O+pr}, v{g}, v{g+1}
            """)
        k(f"s_add_u32 s28, s25, {j*512}")
        k(f"buffer_store_dwordx4 v[{O}:{O+3}], v8, s[40:43], s28 offen")
    k(f"{L_end}:")
    stamp_end(k, 2)
    k(f"{L_exit}:\ns_endpgm")
    return k
```

```python
from asmgen import K
from layout import *
from k1 import srd, srd_off, rbf

K4_GRID = 256
K4_LDS = 81920
DEPTH = 5

def make_k4(name="k4_kernel"):
    k = K(name, vgpr=512, sgpr=102, accum=256)
    L_end, L_exit = name+"_end", name+"_exit"
    stamp_begin(k)
    k(f"""
    s_cmp_ge_u32 s2, {K4_GRID}
    s_cbranch_scc1 {L_exit}
    s_load_dwordx2 s[4:5], s[0:1], {KA['ws']}
    s_load_dwordx2 s[6:7], s[0:1], {KA['out']}
    v_lshrrev_b32 v1, 6, v0
    s_nop 0
    v_readfirstlane_b32 s19, v1
    s_and_b32 s20, s2, 7
    s_lshr_b32 s21, s2, 3
    s_and_b32 s22, s20, 3
    s_lshl_b32 s22, s22, 3
    s_and_b32 s23, s21, 7
    s_add_u32 s22, s22, s23            ; rb2 0..31
    s_lshr_b32 s23, s20, 2
    s_lshl_b32 s23, s23, 2
    s_lshr_b32 s24, s21, 3
    s_add_u32 s23, s23, s24            ; cg2 0..7
    v_and_b32 v1, 63, v0
    v_lshlrev_b32 v2, 4, v1            ; lane*16
    s_waitcnt lgkmcnt(0)
    """)
    srd_off(k, 8, 4, WS_WDF, 40*54*1024)
    srd_off(k, 12, 4, WS_HF, 128*54*1024)
    srd_off(k, 40, 4, WS_X2P, 160*X2_STR)
    srd_off(k, 44, 4, WS_MOD + 5*640*4, 640*4)
    srd(k, 48, 6, 2048*1280)
    VA, VB = 4, 9
    k(f"s_mul_i32 s24, s23, {5*54*1024}\ns_mul_i32 s25, s22, {4*54*1024}")
    for f in range(5): k(f"s_add_u32 s26, s24, {f*54*1024}\nv_add_u32 v{VA+f}, s26, v2")
    for g in range(4): k(f"s_add_u32 s26, s25, {g*54*1024}\nv_add_u32 v{VB+g}, s26, v2")
    k(f"""
    s_mul_i32 s30, s19, {14*1024}
    s_cmp_eq_u32 s19, 3
    s_cselect_b32 s31, 0x7ff00000, 0
    """)
    VA2, VB2 = 224, 229
    for f in range(5): k(f"v_add_u32 v{VA2+f}, s31, v{VA+f}")
    for g in range(4): k(f"v_add_u32 v{VB2+g}, s31, v{VB+g}")
    NS = 14
    def issue(i):
        r = 36 * (i % DEPTH)
        va, vb = (VA, VB) if i < 12 else (VA2, VB2)
        k(f"s_add_u32 s28, s30, {i*1024}")
        for f in range(5): k(f"buffer_load_dwordx4 a[{r+4*f}:{r+4*f+3}], v{va+f}, s[8:11], s28 offen")
        for g in range(4): k(f"buffer_load_dwordx4 a[{r+20+4*g}:{r+23+4*g}], v{vb+g}, s[12:15], s28 offen")
    ACC = 64
    X2R, GB = 16, 28
    k(f"""
    v_and_b32 v14, 15, v1                 ; m
    v_lshrrev_b32 v15, 4, v1              ; g'
    s_lshl_b32 s24, s22, 6
    s_lshl_b32 s25, s19, 4
    s_add_u32 s24, s24, s25
    v_add_u32 v48, s24, v14               ; row
    v_lshlrev_b32 v49, 3, v48
    v_mul_u32_u24 v50, {X2_STR}, v15
    v_add_u32 v49, v49, v50
    s_mul_i32 s25, s23, {20*X2_STR}
    v_add_u32 v49, s25, v49               ; x2 voffset (f = 0)
    s_mul_i32 s25, s23, 320
    v_lshlrev_b32 v50, 4, v15
    v_add_u32 v50, s25, v50
    v_mul_u32_u24 v51, 1280, v48
    v_lshrrev_b32 v52, 1, v50
    v_add_u32 v51, v51, v52
    """)
    for f in range(5):
        k(f"s_mov_b32 s26, {4*f*X2_STR}\nbuffer_load_dwordx2 v[{X2R+2*f}:{X2R+2*f+1}], v49, s[40:43], s26 offen")
        k(f"buffer_load_dwordx4 v[{GB+4*f}:{GB+4*f+3}], v50, s[44:47], 0 offen offset:{64*f}")
    for i in range(DEPTH): issue(i)
    for i in range(80): k(f"v_mov_b32 v{ACC+i}, 0")
    for i in range(NS):
        r = 36 * (i % DEPTH)
        later = min(NS, i + DEPTH) - (i + 1)
        k(f"s_waitcnt vmcnt({9*later})")
        if i == 0: stamp_mid(k, 0)
        for f in range(5):
            for g in range(4):
                t = ACC + 4*(g*5+f)
                k(f"v_mfma_f32_16x16x32_bf16 v[{t}:{t+3}], a[{r+4*f}:{r+4*f+3}], a[{r+20+4*g}:{r+23+4*g}], v[{t}:{t+3}]")
        if i + DEPTH < NS: issue(i + DEPTH)
    stamp_mid(k, 1)
    k(f"""
    s_mul_i32 s24, s19, 20480
    v_add_u32 v53, s24, v2
    s_mul_i32 s24, s19, 5120
    v_add_u32 v54, s24, v2
    v_add_u32 v55, 40960, v54
    """)
    for g in range(4):
        for f in range(5):
            t = ACC + 4*(g*5+f)
            k(f"ds_write_b128 v53, v[{t}:{t+3}] offset:{(g*5+f)*1024}")
    k("s_waitcnt lgkmcnt(0)\ns_barrier")
    R = 144
    for f in range(5):
        for src in range(4):
            reg = 54 if src < 2 else 55
            k(f"ds_read_b128 v[{R+16*f+4*src}:{R+16*f+4*src+3}], v{reg} offset:{(src & 1)*20480 + f*1024}")
        if f == 2: k("s_waitcnt lgkmcnt(8)")
    for f in range(5):
        b = R + 16*f
        k(f"s_waitcnt lgkmcnt({max(0, 16-4*f) if f >= 1 else 15})" if False else "s_waitcnt lgkmcnt(0)" if f == 0 else "s_nop 0")
        for h in range(2):
            k(f"v_pk_add_f32 v[{b+2*h}:{b+2*h+1}], v[{b+2*h}:{b+2*h+1}], v[{b+4+2*h}:{b+5+2*h}]")
            k(f"v_pk_add_f32 v[{b+8+2*h}:{b+9+2*h}], v[{b+8+2*h}:{b+9+2*h}], v[{b+12+2*h}:{b+13+2*h}]")
            k(f"v_pk_add_f32 v[{b+2*h}:{b+2*h+1}], v[{b+2*h}:{b+2*h+1}], v[{b+8+2*h}:{b+9+2*h}]")
        x = X2R + 2*f
        k(f"""
        v_lshlrev_b32 v56, 16, v{x}
        v_and_b32 v57, 0xffff0000, v{x}
        v_lshlrev_b32 v58, 16, v{x+1}
        v_and_b32 v59, 0xffff0000, v{x+1}
        v_pk_fma_f32 v[56:57], v[{b}:{b+1}], v[{GB+4*f}:{GB+4*f+1}], v[56:57]
        v_pk_fma_f32 v[58:59], v[{b+2}:{b+3}], v[{GB+4*f+2}:{GB+4*f+3}], v[58:59]
        v_cvt_pk_bf16_f32 v{60+2*(f&1)}, v56, v57
        v_cvt_pk_bf16_f32 v{61+2*(f&1)}, v58, v59
        buffer_store_dwordx2 v[{60+2*(f&1)}:{61+2*(f&1)}], v51, s[48:51], 0 offen offset:{32*f}
        """)
    k(f"{L_end}:")
    stamp_end(k, 3)
    k(f"{L_exit}:\ns_endpgm")
    return k
```

```python
MB = 1 << 20
WS_MOD = 0
WS_XP  = 1 * MB
XP_STR = 32768 + 256
WS_KX  = 7 * MB
KX_STR = 4096 + 64
WS_X2P = 10 * MB
X2_STR = 16384 + 256
WS_W1F = 13 * MB
W1_USTR = 41 * 1024
WS_WDF = 18 * MB
WS_HF  = 21 * MB
WS_END = 28 * MB
KA = dict(u=0, logA=8, Aim=16, Cre=24, Cim=32, logdt=40, D=48, Bx=56, wg=64, wu=72, wd=80, c=88, wmod=96, out=104, dbg=112, ws=120)
LOG2E = 0x3fb8aa3b
INV2PI = 0x3e22f983
WS_STAMP = 30 * MB
import os
STAMPS = bool(int(os.environ.get('STAMPS', '0')))
def stamp_begin(k):
    if STAMPS: k("s_memrealtime s[92:93]")
def stamp_mid(k, i):
    if STAMPS: k(f"s_memrealtime s[{94+2*i}:{95+2*i}]")
def stamp_end(k, kidx, ws=4, wave='s19'):
    if not STAMPS: return
    k(f"""
    s_mov_b64 exec, -1
    s_waitcnt vmcnt(0) lgkmcnt(0)
    s_memrealtime s[98:99]
    s_lshl_b32 s90, s2, 3
    s_add_u32 s90, s90, {wave}
    s_add_u32 s90, s90, {kidx*8192}
    s_lshl_b32 s90, s90, 5
    s_add_u32 s90, s90, {WS_STAMP}
    s_add_u32 s88, s{ws}, s90
    s_addc_u32 s89, s{ws+1}, 0
    s_waitcnt lgkmcnt(0)
    v_mov_b32 v2, s92
    v_mov_b32 v3, s93
    v_mov_b32 v4, s94
    v_mov_b32 v5, s95
    v_mov_b32 v6, s96
    v_mov_b32 v7, s97
    v_mov_b32 v8, s98
    v_mov_b32 v9, s99
    v_mov_b32 v10, 0
    s_mov_b64 exec, 1
    global_store_dwordx4 v10, v[2:5], s[88:89]
    global_store_dwordx4 v10, v[6:9], s[88:89] offset:16
    s_waitcnt vmcnt(0)
    """)
```

```python
import sys
from asmgen import program
from k1 import *
from k2 import *
from k3 import *
from k4 import *
ks = []; L = []
k1 = make_k1(); ks.append(k1); L.append((k1, K1_GRID, 256, K1_LDS))
k2 = make_k2(); ks.append(k2); L.append((k2, K2_GRID, 256, K2_LDS))
k3 = make_k3(); ks.append(k3); L.append((k3, K3_GRID, 256, K3_LDS))
k4 = make_k4(); ks.append(k4); L.append((k4, K4_GRID, 256, K4_LDS))
open(sys.argv[1] if len(sys.argv) > 1 else 'main.s', 'w').write(program(ks, L))
```

```python
import sys
from asmgen import program, K
from k1 import *
from k2 import *
from k3 import *
from k4 import *
def empty(name):
    k = K(name, vgpr=8, sgpr=16); k("s_endpgm"); return k
def build(path, extra_front, extra_back, g=1):
    ks = []; L = []
    k1 = make_k1(); k2 = make_k2(); k3 = make_k3(); k4 = make_k4(); e = empty("empty_kernel")
    ks = [k1, k2, k3, k4, e]
    L = [(e, g, 64, 0)]*extra_front + [(k1, K1_GRID, 256, K1_LDS), (k2, K2_GRID, 256, K2_LDS), (k3, K3_GRID, 256, K3_LDS), (k4, K4_GRID, 256, K4_LDS)] + [(e, g, 64, 0)]*extra_back
    if extra_front + extra_back == 0: ks = ks[:4]
    open(path, 'w').write(program(ks, L, verbose=False))
build('../exp/v_base.s', 0, 0)
build('../exp/v_back4.s', 0, 4)
build('../exp/v_back8.s', 0, 8)
build('../exp/v_front4.s', 4, 0)
build('../exp/v_back4_256.s', 0, 4, g=256)
```

```python
MB = 1 << 20
WS_MOD = 0
WS_XP  = 1 * MB
XP_STR = 32768 + 256
WS_KX  = 7 * MB
KX_STR = 4096 + 64
WS_X2P = 10 * MB
X2_STR = 16384 + 256
WS_W1F = 13 * MB
W1_USTR = 41 * 1024
WS_WDF = 18 * MB
WS_HF  = 21 * MB
WS_END = 28 * MB
KA = dict(u=0, logA=8, Aim=16, Cre=24, Cim=32, logdt=40, D=48, Bx=56, wg=64, wu=72, wd=80, c=88, wmod=96, out=104, dbg=112, ws=120)
LOG2E = 0x3fb8aa3b
INV2PI = 0x3e22f983
WS_STAMP = 30 * MB
import os
STAMPS = bool(int(os.environ.get('STAMPS', '0')))
def stamp_begin(k):
    if STAMPS: k("s_memrealtime s[92:93]")
def stamp_mid(k, i):
    if STAMPS: k(f"s_memrealtime s[{94+2*i}:{95+2*i}]")
def stamp_end(k, kidx, ws=4, wave='s19'):
    if not STAMPS: return
    k(f"""
    s_mov_b64 exec, -1
    s_waitcnt vmcnt(0) lgkmcnt(0)
    s_memrealtime s[98:99]
    s_lshl_b32 s90, s2, 3
    s_add_u32 s90, s90, {wave}
    s_add_u32 s90, s90, {kidx*8192}
    s_lshl_b32 s90, s90, 5
    s_add_u32 s90, s90, {WS_STAMP}
    s_add_u32 s88, s{ws}, s90
    s_addc_u32 s89, s{ws+1}, 0
    s_waitcnt lgkmcnt(0)
    v_mov_b32 v2, s92
    v_mov_b32 v3, s93
    v_mov_b32 v4, s94
    v_mov_b32 v5, s95
    v_mov_b32 v6, s96
    v_mov_b32 v7, s97
    v_mov_b32 v8, s98
    v_mov_b32 v9, s99
    v_mov_b32 v10, 0
    s_mov_b64 exec, 1
    global_store_dwordx4 v10, v[2:5], s[88:89]
    global_store_dwordx4 v10, v[6:9], s[88:89] offset:16
    s_waitcnt vmcnt(0)
    """)

DBGST = bool(int(os.environ.get('DBGST', '0')))
_old_begin, _old_end = stamp_begin, stamp_end
def stamp_begin(k):
    if DBGST: k("s_memrealtime s[92:93]")
    else: _old_begin(k)
def stamp_end(k, kidx, ws=4, wave='s19'):
    if not DBGST: return _old_end(k, kidx, ws, wave)
    k(f"""
    s_mov_b64 exec, -1
    s_waitcnt vmcnt(0) lgkmcnt(0)
    s_memrealtime s[98:99]
    s_load_dwordx2 s[88:89], s[0:1], 112
    s_waitcnt lgkmcnt(0)
    s_sub_u32 s88, s88, {kidx*512}
    s_subb_u32 s89, s89, 0
    s_not_b32 s92, s92
    v_mov_b32 v2, s92
    v_mov_b32 v3, s98
    v_mov_b32 v10, 0
    s_mov_b64 exec, 1
    global_atomic_umax v10, v2, s[88:89] offset:{kidx*8}
    global_atomic_umax v10, v3, s[88:89] offset:{kidx*8+4}
    global_atomic_umax v10, v2, s[88:89] offset:{kidx*8+1536}
    global_atomic_umax v10, v3, s[88:89] offset:{kidx*8+4+1536}
    s_waitcnt vmcnt(0)
    """)
```

```python
MB = 1 << 20
WS_MOD = 0
WS_XP  = 1 * MB
XP_STR = 32768 + 256
WS_KX  = 7 * MB
KX_STR = 4096 + 64
WS_X2P = 10 * MB
X2_STR = 16384 + 256
WS_W1F = 13 * MB
W1_USTR = 41 * 1024
WS_WDF = 18 * MB
WS_HF  = 21 * MB
WS_END = 28 * MB
KA = dict(u=0, logA=8, Aim=16, Cre=24, Cim=32, logdt=40, D=48, Bx=56, wg=64, wu=72, wd=80, c=88, wmod=96, out=104, dbg=112, ws=120)
LOG2E = 0x3fb8aa3b
INV2PI = 0x3e22f983
WS_STAMP = 30 * MB
import os
STAMPS = bool(int(os.environ.get('STAMPS', '0')))
def stamp_begin(k):
    if STAMPS: k("s_memrealtime s[92:93]")
def stamp_mid(k, i):
    if STAMPS: k(f"s_memrealtime s[{94+2*i}:{95+2*i}]")
def stamp_end(k, kidx, ws=4, wave='s19'):
    if not STAMPS: return
    k(f"""
    s_mov_b64 exec, -1
    s_waitcnt vmcnt(0) lgkmcnt(0)
    s_memrealtime s[98:99]
    s_lshl_b32 s90, s2, 3
    s_add_u32 s90, s90, {wave}
    s_add_u32 s90, s90, {kidx*8192}
    s_lshl_b32 s90, s90, 5
    s_add_u32 s90, s90, {WS_STAMP}
    s_add_u32 s88, s{ws}, s90
    s_addc_u32 s89, s{ws+1}, 0
    s_waitcnt lgkmcnt(0)
    v_mov_b32 v2, s92
    v_mov_b32 v3, s93
    v_mov_b32 v4, s94
    v_mov_b32 v5, s95
    v_mov_b32 v6, s96
    v_mov_b32 v7, s97
    v_mov_b32 v8, s98
    v_mov_b32 v9, s99
    v_mov_b32 v10, 0
    s_mov_b64 exec, 1
    global_store_dwordx4 v10, v[2:5], s[88:89]
    global_store_dwordx4 v10, v[6:9], s[88:89] offset:16
    s_waitcnt vmcnt(0)
    """)

DBGST = bool(int(os.environ.get('DBGST', '0')))
_old_begin, _old_end = stamp_begin, stamp_end
def stamp_begin(k):
    if DBGST: k("s_memrealtime s[92:93]")
    else: _old_begin(k)
DBG_A = {0: (10, 300), 1: (10, 200), 2: (10, 250), 3: (10, 250)}
def stamp_end(k, kidx, ws=4, wave='s19'):
    if not DBGST: return _old_end(k, kidx, ws, wave)
    L = k.label('dbgskip')
    a, b = DBG_A[kidx]
    k(f"""
    s_mov_b64 exec, -1
    s_waitcnt vmcnt(0) lgkmcnt(0)
    s_memrealtime s[98:99]
    s_load_dwordx2 s[88:89], s[0:1], 112
    s_waitcnt lgkmcnt(0)
    s_cmp_lg_u32 {wave}, 0
    s_cbranch_scc1 {L}
    s_cmp_eq_u32 s2, {a}
    s_cselect_b32 s90, 0, -1
    s_cmp_eq_u32 s2, {b}
    s_cselect_b32 s90, 8, s90
    s_cmp_eq_u32 s90, -1
    s_cbranch_scc1 {L}
    s_add_u32 s88, s88, s90
    s_addc_u32 s89, s89, 0
    s_add_u32 s88, s88, {(3-kidx)*512 + kidx*16}
    s_addc_u32 s89, s89, 0
    v_mov_b32 v2, s92
    v_mov_b32 v3, s98
    v_mov_b32 v10, 0
    s_mov_b64 exec, 1
    global_store_dwordx2 v10, v[2:3], s[88:89]
    s_waitcnt vmcnt(0)
    {L}:
    """)
```
